```python
import torch

def _softmax(x, axis=-1):
    return torch.softmax(x, dim=axis)
def _gelu(x):
    return torch.nn.functional.gelu(x, approximate="tanh")
def _silu(x):
    return torch.nn.functional.silu(x)
def _sigmoid(x):
    return torch.sigmoid(x)
def _layernorm(x, axis=-1, eps=1e-5):
    m = x.mean(dim=axis, keepdim=True)
    v = x.var(dim=axis, keepdim=True, unbiased=False)
    return (x - m) / torch.sqrt(v + eps)
def _scatter_add(tgt, idx, src, axis=0):
    return tgt.clone().index_add_(axis, idx, src)
def _segment_sum(src, seg, n):
    out = torch.zeros((n,) + src.shape[1:], dtype=src.dtype)
    return out.index_add_(0, seg, src)
def _pad(x, pw):
    flat = tuple(v for pair in reversed(pw) for v in pair)
    return torch.nn.functional.pad(x, flat)

kernel_name = 'recurrent_scan__gqa_block_cached__glu_gated_swiglu__decode'

def setup_inputs():

    _w = (lambda a: (lambda t: t.to(torch.bfloat16) if t.is_floating_point() else t)(torch.as_tensor(a)))
    def _A_setup():
        B, Sq, D = 2, 1, 512
        Hq, Hkv, Sk, Dh = 32, 8, 32768, 128
        assert Hq % Hkv == 0, (Hq, Hkv)
        return {
            "x": _w((lambda *s: torch.randn(*s, dtype=torch.bfloat16) * 0.4)(B, Sq, D)),
            "k_cache": _w((lambda *s: torch.randn(*s, dtype=torch.bfloat16) * 1.6)(B, Hkv, Sk, Dh)),
            "v_cache": _w((lambda *s: torch.randn(*s, dtype=torch.bfloat16) * 1.6)(B, Hkv, Sk, Dh)),
            "wq": _w((lambda *s: torch.randn(*s, dtype=torch.bfloat16) * 1.6)(D, Hq * Dh) * (D ** -0.5)),
            "wo": _w((lambda *s: torch.randn(*s, dtype=torch.bfloat16) * 1.6)(Hq * Dh, D) * ((Hq * Dh) ** -0.5)),
        }
    _A_in = _A_setup()

    def _B_setup():
        B, S, D, F = 2, 1, 512, 1792
        return {
            "x": _w((lambda *s: torch.randn(*s, dtype=torch.bfloat16) * 0.4)(B, S, D)),
            "w1": _w((lambda *s: torch.randn(*s, dtype=torch.bfloat16) * 1.6)(D, F) * (2.0 / D) ** 0.5),
            "w3": _w((lambda *s: torch.randn(*s, dtype=torch.bfloat16) * 1.6)(D, F) * (2.0 / D) ** 0.5),
            "w2": _w((lambda *s: torch.randn(*s, dtype=torch.bfloat16) * 1.6)(F, D) * (2.0 / F) ** 0.5),
        }
    _B_in = _B_setup()

    return {
        "A_x": _A_in["x"],
        "A_k_cache": _A_in["k_cache"],
        "A_v_cache": _A_in["v_cache"],
        "A_wq": _A_in["wq"],
        "A_wo": _A_in["wo"],
        "B_x": _B_in["x"],
        "B_w1": _B_in["w1"],
        "B_w3": _B_in["w3"],
        "B_w2": _B_in["w2"],
    }

def reference(A_x, A_k_cache, A_v_cache, A_wq, A_wo, B_x, B_w1, B_w3, B_w2):
    def _A_ref(x, k_cache, v_cache, wq, wo):
        B, Sq, D = x.shape
        Hq, Dh = 32, 128
        Hkv = k_cache.shape[1]
        rep = Hq // Hkv
        q = (lambda x, *d: x.permute(*d))((x @ wq).reshape(B, Sq, Hq, Dh), 0, 2, 1, 3)
        k = (lambda x, n, axis: torch.repeat_interleave(x, n, dim=axis))(k_cache, rep, axis=1)
        v = (lambda x, n, axis: torch.repeat_interleave(x, n, dim=axis))(v_cache, rep, axis=1)
        scores = torch.einsum("bhqd,bhkd->bhqk", q, k) * (Dh ** -0.5)
        p = _softmax(scores, axis=-1)
        o = torch.einsum("bhqk,bhkd->bhqd", p, v)
        return (lambda x, *d: x.permute(*d))(o, 0, 2, 1, 3).reshape(B, Sq, Hq * Dh) @ wo

    def _B_ref(x, w1, w3, w2):
        gate = torch.einsum("bsd,df->bsf", x, w1)
        up = torch.einsum("bsd,df->bsf", x, w3)
        h = _silu(gate) * up
        out = torch.einsum("bsf,fd->bsd", h, w2)
        return out

    x = A_x
    xn = _layernorm(x, axis=-1)
    s = _A_ref(xn, A_k_cache, A_v_cache, A_wq, A_wo)
    g = _silu(_B_ref(xn, B_w1, B_w3, B_w2))
    return x + s * g
```

```python
import sys, struct
NAME = "recurrent_scan__gqa_block_cached__glu_gated_swiglu__decode_kernel"
HEADER = open("recurrent_scan__gqa_block_cached__glu_gated_swiglu__decode.s.ref").read().split("; Override launch")[0]

def f32(x): return struct.unpack("<I", struct.pack("<f", x))[0]

QIN  = 0x0
HBUF = 0x8000
PART = 0x100000
YBUF = 0x200000
L_XN = 0
L_Q  = 2048
L_PW = 4096
L_ML = 12288
LDS_BYTES = 12544

class G:
    def __init__(s, D=6, wflag="", spin=1<<16, throttle=2):
        s.L = []; s.D = D; s.wflag = wflag; s.spin = spin; s.nlab = 0; s.throttle = throttle
    def a(s, t): s.L.append("    " + t)
    def lab(s, t): s.L.append(t + ":")
    def newlab(s, p): s.nlab += 1; return f"L_{p}_{s.nlab}"
    def srd(s, d, p, size):
        s.a(f"s_mov_b32 s{d}, s{p}"); s.a(f"s_and_b32 s{d+1}, s{p+1}, 0xffff")
        s.a(f"s_mov_b32 s{d+2}, {size}"); s.a(f"s_mov_b32 s{d+3}, 0x20000")
    def nop(s, n): s.a(f"s_nop {n-1}")
    def row_allreduce(s, op, regs):
        for r in (8, 4, 2, 1):
            s.nop(2) if len(regs) < 3 else None
            for v in regs:
                s.a(f"{op}_dpp v{v}, v{v}, v{v} row_ror:{r} row_mask:0xf bank_mask:0xf")
    def xrow_allreduce(s, op, regs, tmps):
        for sw in ("v_permlane16_swap_b32", "v_permlane32_swap_b32"):
            for v, t in zip(regs, tmps): s.a(f"v_mov_b32 v{t}, v{v}")
            s.nop(2)
            for v, t in zip(regs, tmps): s.a(f"{sw} v{v}, v{t}")
            s.nop(1)
            for v, t in zip(regs, tmps): s.a(f"{op} v{v}, v{v}, v{t}")
    def reduce64(s, acc):
        s.nop(3)
        for c in range(8): s.a(f"v_permlane32_swap_b32 v{acc[c]}, v{acc[8+c]}")
        s.nop(1)
        for c in range(8): s.a(f"v_add_f32 v{acc[c]}, v{acc[c]}, v{acc[8+c]}")
        s.nop(2)
        for c in range(4): s.a(f"v_permlane16_swap_b32 v{acc[c]}, v{acc[4+c]}")
        s.nop(1)
        for c in range(4): s.a(f"v_add_f32 v{acc[c]}, v{acc[c]}, v{acc[4+c]}")
        s.nop(2)
        s.row_allreduce("v_add_f32", acc[:4])
    def gemv_pair(s, acc, ra, rb, xp0, xp1, t0, t1):
        for k in range(4):
            s.a(f"v_perm_b32 v{t0}, v{rb+k}, v{ra+k}, s80")
            s.a(f"v_perm_b32 v{t1}, v{rb+k}, v{ra+k}, s81")
            s.a(f"v_dot2c_f32_bf16 v{acc[2*k]}, v{t0}, v{xp0}")
            s.a(f"v_dot2c_f32_bf16 v{acc[2*k+1]}, v{t1}, v{xp0}")
            s.a(f"v_dot2c_f32_bf16 v{acc[8+2*k]}, v{t0}, v{xp1}")
            s.a(f"v_dot2c_f32_bf16 v{acc[8+2*k+1]}, v{t1}, v{xp1}")
    def bf16r(s, d, x):
        s.a(f"v_cvt_pk_bf16_f32 v{d}, v{x}, v{x}")
        s.a(f"v_and_b32 v{d}, 0xffff0000, v{d}")
    def sanitize(s, regs):
        for r in regs:
            s.a(f"v_cmp_eq_u32 vcc, -1, v{r}")
            s.nop(2)
            s.a(f"v_cndmask_b32 v{r}, v{r}, v15, vcc")
    def silu(s, d, x, t):
        s.a(f"v_mul_f32 v{t}, s83, v{x}")
        s.a(f"v_exp_f32 v{t}, v{t}")
        s.nop(1)
        s.a(f"v_add_f32 v{t}, 1.0, v{t}")
        s.a(f"v_rcp_f32 v{t}, v{t}")
        s.nop(1)
        s.a(f"v_mul_f32 v{d}, v{x}, v{t}")
    def poll_begin(s):
        l = s.newlab("poll"); s.a(f"s_mov_b32 s90, {s.spin}"); s.lab(l); return l
    def poll_end(s, l, sleep=1):
        d = s.newlab("pdone")
        s.a(f"s_cbranch_vccz {d}")
        if sleep: s.a(f"s_sleep {sleep}")
        s.a("s_sub_u32 s90, s90, 1"); s.a("s_cmp_lg_u32 s90, 0"); s.a(f"s_cbranch_scc1 {l}")
        s.lab(d)
    def any_sentinel(s, regs, t):
        regs = list(regs)
        s.a(f"v_max_u32 v{t}, v{regs[0]}, v{regs[1]}")
        i = 2
        while i < len(regs):
            if i + 1 < len(regs): s.a(f"v_max3_u32 v{t}, v{t}, v{regs[i]}, v{regs[i+1]}"); i += 2
            else: s.a(f"v_max_u32 v{t}, v{t}, v{regs[i]}"); i += 1
        s.a(f"v_cmp_eq_u32 vcc, -1, v{t}")

    def gen(s):
        a = s.a; D = s.D; W = s.wflag
        s.L.append(HEADER.rstrip())
        s.L.append(f"; @launch grid=(256,1,1) block=(320,1,1) lds={LDS_BYTES}")
        s.L.append('.amdgcn_target "amdgcn-amd-amdhsa--gfx950"')
        s.L.append(".text"); s.L.append(f".globl {NAME}"); s.L.append(".p2align 8")
        s.L.append(f".type {NAME},@function"); s.lab(NAME)
        a("s_cmp_ge_u32 s2, 256"); a("s_cbranch_scc1 L_end")
        a("s_load_dwordx16 s[16:31], s[0:1], 0")
        a("s_load_dwordx8 s[32:39], s[0:1], 64")
        a("v_lshrrev_b32 v1, 6, v0")
        a("v_and_b32 v0, 63, v0")
        a("s_and_b32 s4, s2, 7")
        a("v_readfirstlane_b32 s3, v1")
        a("s_lshr_b32 s5, s2, 3")
        a("s_and_b32 s6, s5, 15")
        a("s_lshr_b32 s7, s5, 4")
        a("s_lshl_b32 s8, s7, 3"); a("s_add_u32 s8, s8, s4")
        a(f"s_mov_b32 s82, {f32(1.4426950408889634)}")
        a(f"s_mov_b32 s83, {f32(-1.4426950408889634)}")
        a(f"s_mov_b32 s84, {f32(128**-0.5)}")
        a("s_cmp_eq_u32 s3, 0"); a("s_cbranch_scc1 L_helper")
        s.streamer()
        s.lab("L_helper")
        s.helper()
        s.lab("L_end"); a("s_endpgm")
        s.L += ['.section .rodata,"a"', ".p2align 6", f".amdhsa_kernel {NAME}",
                "  .amdhsa_next_free_vgpr 256", "  .amdhsa_next_free_sgpr 96", "  .amdhsa_accum_offset 256",
                "  .amdhsa_group_segment_fixed_size 0", "  .amdhsa_kernarg_size 96", "  .amdhsa_user_sgpr_count 2",
                "  .amdhsa_user_sgpr_kernarg_segment_ptr 1", "  .amdhsa_system_sgpr_workgroup_id_x 1",
                "  .amdhsa_float_denorm_mode_32 3", ".end_amdhsa_kernel"]
        return "\n".join(s.L) + "\n"

    def streamer(s):
        a = s.a; D = s.D
        NB = 32
        a("v_and_b32 v7, 15, v0")
        a("v_lshrrev_b32 v8, 4, v0")
        a("v_and_b32 v9, 3, v7"); a("v_lshrrev_b32 v10, 2, v7")
        a("v_lshl_add_u32 v9, v9, 2, v10")
        a("v_lshlrev_b32 v1, 8, v9"); a("v_lshl_add_u32 v1, v8, 4, v1")
        a("v_lshlrev_b32 v2, 4, v0")
        a("v_mov_b32 v3, 0"); a("v_mov_b32 v4, 0")
        a("v_mov_b32 v11, 0xffff"); a("v_mov_b32 v12, 0xffff0000")
        a("v_cmp_eq_u32 vcc, 0, v10"); s.nop(2); a("v_cndmask_b32 v3, v3, v11, vcc")
        a("v_cmp_eq_u32 vcc, 1, v10"); s.nop(2); a("v_cndmask_b32 v3, v3, v12, vcc")
        a("v_cmp_eq_u32 vcc, 2, v10"); s.nop(2); a("v_cndmask_b32 v4, v4, v11, vcc")
        a("v_cmp_eq_u32 vcc, 3, v10"); s.nop(2); a("v_cndmask_b32 v4, v4, v12, vcc")
        a("v_and_b32 v13, 3, v7"); a("v_lshlrev_b32 v13, 8, v13"); a("v_lshl_add_u32 v13, v8, 4, v13")
        a("s_sub_u32 s9, s3, 1")
        a("v_lshlrev_b32 v14, 5, v7"); a("v_lshl_add_u32 v14, v8, 2, v14")
        a("s_lshl_b32 s10, s9, 11"); a("v_add_u32 v14, s10, v14")
        a("v_and_b32 v15, 3, v0"); a("v_lshlrev_b32 v15, 3, v15")
        a("s_lshl_b32 s10, s9, 5"); a("v_add_u32 v15, s10, v15")
        a("s_lshl_b32 s12, s8, 23"); a("s_lshl_b32 s13, s6, 19"); a("s_add_u32 s12, s12, s13")
        a("s_lshl_b32 s13, s9, 12"); a("s_add_u32 s12, s12, s13")
        a("v_mov_b32 v5, 0xff800000"); a("v_mov_b32 v6, 0")
        for r in range(20, 28): a(f"v_mov_b32 v{r}, 0")
        a("s_waitcnt lgkmcnt(0)")
        s.srd(40, 18, 0x8000000); s.srd(44, 20, 0x8000000)
        def issue(slot):
            R = 64 + 32 * slot
            for i in range(4): a(f"buffer_load_dwordx4 v[{R+4*i}:{R+4*i+3}], v1, s[40:43], s12 offen offset:{64*i} nt")
            for t in range(4): a(f"buffer_load_dwordx4 v[{R+16+4*t}:{R+16+4*t+3}], v2, s[44:47], s12 offen offset:{1024*t} nt")
            a("s_add_u32 s12, s12, 16384")
        def block(slot, after, refill):
            R = 64 + 32 * slot
            a(f"s_waitcnt vmcnt({8*after+4})")
            a(f"v_mfma_f32_16x16x32_bf16 v[16:19], v[{R}:{R+3}], v[48:51], 0")
            for i in range(1, 4):
                a(f"v_mfma_f32_16x16x32_bf16 v[16:19], v[{R+4*i}:{R+4*i+3}], v[{48+4*i}:{51+4*i}], v[16:19]")
            s.nop(8)
            a("v_cvt_pk_bf16_f32 v36, v16, v17"); a("v_cvt_pk_bf16_f32 v37, v18, v19")
            a("v_lshlrev_b32 v40, 16, v36"); a("v_and_b32 v41, 0xffff0000, v36")
            a("v_lshlrev_b32 v42, 16, v37"); a("v_and_b32 v43, 0xffff0000, v37")
            for r in range(40, 44): a(f"v_mul_f32 v{r}, s84, v{r}")
            a("v_cvt_pk_bf16_f32 v36, v40, v41"); a("v_cvt_pk_bf16_f32 v37, v42, v43")
            a("v_lshlrev_b32 v40, 16, v36"); a("v_and_b32 v41, 0xffff0000, v36")
            a("v_lshlrev_b32 v42, 16, v37"); a("v_and_b32 v43, 0xffff0000, v37")
            a("v_max3_f32 v7, v40, v41, v42"); a("v_max3_f32 v7, v7, v43, v5")
            s.xrow_allreduce("v_max_f32", [7], [8])
            a("v_sub_f32 v9, v5, v7"); a("v_mul_f32 v10, s82, v7"); a("v_mul_f32 v9, s82, v9")
            a("v_mov_b32 v5, v7")
            for r in range(40, 44): a(f"v_fma_f32 v{r}, v{r}, s82, -v10")
            a("v_exp_f32 v9, v9")
            for r in range(40, 44): a(f"v_exp_f32 v{r}, v{r}")
            s.nop(1)
            a("v_add_f32 v11, v40, v41"); a("v_add_f32 v12, v42, v43")
            for t in range(4): a(f"v_cvt_pk_bf16_f32 v{36+t}, v{40+t}, v{40+t}")
            a("v_add_f32 v11, v11, v12")
            a("v_fma_f32 v6, v6, v9, v11")
            for t in range(4):
                a(f"v_and_b32 v{28+2*t}, v3, v{36+t}"); a(f"v_and_b32 v{29+2*t}, v4, v{36+t}")
            for r in range(4):
                a(f"v_mul_f32_dpp v{20+r}, v9, v{20+r} quad_perm:[{r},{r},{r},{r}] row_mask:0xf bank_mask:0xf")
                a(f"v_mul_f32_dpp v{24+r}, v9, v{24+r} quad_perm:[{r},{r},{r},{r}] row_mask:0xf bank_mask:0xf")
            a(f"s_waitcnt vmcnt({8*after})")
            s.nop(1)
            for t in range(4):
                V = R + 16 + 4 * t
                a(f"v_mfma_f32_16x16x16_bf16 v[20:23], v[{28+2*t}:{29+2*t}], v[{V}:{V+1}], v[20:23]")
                a(f"v_mfma_f32_16x16x16_bf16 v[24:27], v[{28+2*t}:{29+2*t}], v[{V+2}:{V+3}], v[24:27]")
            if refill: issue(slot)
        for k in range(D):
            if k >= s.throttle: a(f"s_waitcnt vmcnt({8*(s.throttle-1)})")
            issue(k)
        a("s_barrier")
        for i in range(4): a(f"ds_read_b128 v[{48+4*i}:{51+4*i}], v13 offset:{L_Q+64*i}")
        a("s_waitcnt lgkmcnt(0)")
        nloop = (NB - D) // D
        rem = NB - nloop * D
        a(f"s_mov_b32 s14, {nloop}")
        s.lab("L_sloop")
        for k in range(D): block(k, D - 1, True)
        a("s_sub_u32 s14, s14, 1"); a("s_cmp_lg_u32 s14, 0"); a("s_cbranch_scc1 L_sloop")
        to_issue = rem - D
        for k in range(rem):
            slot = k % D
            if k < to_issue: block(slot, D - 1, True)
            else: block(slot, rem - 1 - k, False)
        s.xrow_allreduce("v_add_f32", [6], [8])
        s.nop(8)
        for r in range(4):
            a(f"ds_write_b32 v14, v{20+r} offset:{L_PW+512*r}")
            a(f"ds_write_b32 v14, v{24+r} offset:{L_PW+512*r+16}")
        a("v_mov_b32 v8, v5"); a("v_mov_b32 v9, v6")
        a(f"ds_write_b64 v15, v[8:9] offset:{L_ML}")
        a("s_waitcnt lgkmcnt(0)")
        a("s_barrier")
        a("s_endpgm")

    def helper(s):
        a = s.a; W = s.wflag
        a("s_setprio 3")
        a("s_mov_b32 s80, 0x05040100"); a("s_mov_b32 s81, 0x07060302")
        a("v_lshlrev_b32 v1, 4, v0")
        a("v_mov_b32 v15, 0x7fc07fc0")
        for r in range(12, 15): pass
        a("v_mov_b32 v48, -1"); a("v_mov_b32 v49, -1"); a("v_mov_b32 v50, -1"); a("v_mov_b32 v51, -1")
        a("v_lshrrev_b32 v2, 4, v0")
        a("v_lshrrev_b32 v3, 1, v2"); a("v_and_b32 v14, 1, v2"); a("v_lshlrev_b32 v14, 3, v14")
        a("s_waitcnt lgkmcnt(0)")
        s.srd(40, 16, 2048)
        s.srd(44, 22, 4 << 20)
        s.srd(48, 38, 4 << 20)
        s.srd(52, 36, 256)
        s.srd(56, 32, 1792 * 1024)
        s.srd(60, 24, 4 << 20)
        s.srd(64, 34, 2048)
        s.srd(68, 28, 1792 * 1024)
        s.srd(72, 30, 1792 * 1024)
        a("buffer_load_dwordx4 v[4:7], v1, s[40:43], 0 offen")
        a("buffer_load_dwordx4 v[8:11], v1, s[40:43], 0 offen offset:1024")
        a("s_lshl_b32 s10, s2, 12"); a(f"s_add_u32 s10, s10, {PART}")
        for k in range(4): a(f"buffer_store_dwordx4 v[48:51], v1, s[48:51], s10 offen offset:{1024*k} sc1")
        a("s_lshl_b32 s11, s2, 11"); a(f"s_add_u32 s11, s11, {YBUF}")
        for k in range(2): a(f"buffer_store_dwordx4 v[48:51], v1, s[48:51], s11 offen offset:{1024*k} sc1")
        a("s_cmp_ge_u32 s2, 224"); a("s_cbranch_scc1 L_noclrh")
        a("v_lshlrev_b32 v12, 12, v0")
        a("s_lshl_b32 s12, s2, 4"); a(f"s_add_u32 s12, s12, {HBUF}")
        a("s_mov_b64 exec, 3")
        a("buffer_store_dwordx4 v[48:51], v12, s[48:51], s12 offen sc1")
        a("s_mov_b64 exec, -1")
        s.lab("L_noclrh")
        a("s_lshl_b32 s13, s8, 10")
        a("s_cmp_lg_u32 s6, 0"); a("s_cbranch_scc1 L_noclrq")
        a("buffer_store_dwordx4 v[48:51], v1, s[48:51], s13 offen sc1")
        s.lab("L_noclrq")
        a("s_lshl_b32 s12, s4, 10"); a("s_lshl_b32 s14, s5, 5"); a("s_add_u32 s12, s12, s14")
        a("v_lshlrev_b32 v12, 14, v0"); a("v_add_u32 v12, s12, v12")
        a("s_mov_b32 s14, 0")
        for i in range(4):
            for row in range(2):
                for half in range(2):
                    r = 64 + ((i * 2 + row) * 2 + half) * 4
                    a(f"buffer_load_dwordx4 v[{r}:{r+3}], v12, s[44:47], s14 offen offset:{16*half} {W}")
                a(f"s_add_u32 s14, s14, {8192 if row == 0 else 1048576 - 8192}")
        a("s_waitcnt vmcnt(16)")
        a("v_mov_b32 v13, 1"); a("v_mov_b32 v12, s2")
        a("s_mov_b64 exec, 1")
        a("buffer_store_byte v13, v12, s[52:55], 0 offen sc1")
        a("s_mov_b64 exec, -1")
        for b in range(2):
            for k in range(4):
                a(f"v_lshlrev_b32 v{16+8*b+2*k}, 16, v{4+4*b+k}")
                a(f"v_and_b32 v{16+8*b+2*k+1}, 0xffff0000, v{4+4*b+k}")
        for b in range(2):
            e = 16 + 8 * b
            a(f"v_add_f32 v{32+b}, v{e}, v{e+1}")
            for i in range(2, 8): a(f"v_add_f32 v{32+b}, v{32+b}, v{e+i}")
        s.row_allreduce("v_add_f32", [32, 33]); s.xrow_allreduce("v_add_f32", [32, 33], [34, 35])
        a(f"v_mul_f32 v32, {f32(1/512)}, v32"); a(f"v_mul_f32 v33, {f32(1/512)}, v33")
        for b in range(2):
            e = 16 + 8 * b
            a(f"v_mov_b32 v{36+b}, 0")
            for i in range(8):
                a(f"v_sub_f32 v38, v{e+i}, v{32+b}"); a(f"v_fmac_f32 v{36+b}, v38, v38")
        s.row_allreduce("v_add_f32", [36, 37]); s.xrow_allreduce("v_add_f32", [36, 37], [34, 35])
        for b in range(2):
            a(f"v_mul_f32 v{36+b}, {f32(1/512)}, v{36+b}")
            s.bf16r(32 + b, 32 + b)
            s.bf16r(36 + b, 36 + b)
            a(f"v_add_f32 v{36+b}, {f32(1e-5)}, v{36+b}")
            s.bf16r(36 + b, 36 + b)
            a(f"v_sqrt_f32 v{36+b}, v{36+b}"); s.nop(1)
            s.bf16r(36 + b, 36 + b)
            a(f"v_rcp_f32 v{38+b}, v{36+b}")
        for b in range(2):
            e = 16 + 8 * b
            for i in range(8):
                a(f"v_sub_f32 v{e+i}, v{e+i}, v{32+b}")
                s.bf16r(e + i, e + i)
                a(f"v_mul_f32 v40, v{e+i}, v{38+b}")
                a(f"v_fma_f32 v41, -v40, v{36+b}, v{e+i}")
                a(f"v_fma_f32 v{e+i}, v41, v{38+b}, v40")
            for k in range(4):
                a(f"v_cvt_pk_bf16_f32 v{4+4*b+k}, v{e+2*k}, v{e+2*k+1}")
        a(f"ds_write_b128 v1, v[4:7] offset:{L_XN}")
        a(f"ds_write_b128 v1, v[8:11] offset:{L_XN+1024}")
        a("v_lshlrev_b32 v12, 2, v0")
        a("s_waitcnt lgkmcnt(0)")
        for b in range(2):
            for i in range(4): a(f"ds_read_b32 v{52+4*b+i}, v12 offset:{L_XN+1024*b+256*i}")
        for r in range(16, 48): a(f"v_mov_b32 v{r}, 0")
        a("s_waitcnt vmcnt(1) lgkmcnt(0)")
        accA = list(range(16, 32)); accB = list(range(32, 48))
        for i in range(4):
            for half, acc in ((0, accA), (1, accB)):
                ra = 64 + ((i * 2 + 0) * 2 + half) * 4; rb = 64 + ((i * 2 + 1) * 2 + half) * 4
                s.gemv_pair(acc, ra, rb, 52 + i, 56 + i, 12, 13)
        s.reduce64(accA); s.reduce64(accB)
        a("v_cvt_pk_bf16_f32 v4, v16, v17"); a("v_cvt_pk_bf16_f32 v5, v18, v19")
        a("v_cvt_pk_bf16_f32 v6, v32, v33"); a("v_cvt_pk_bf16_f32 v7, v34, v35")
        s.sanitize([4, 5, 6, 7])
        a("v_lshlrev_b32 v12, 2, v0")
        a("s_mov_b32 s15, 0x01010101")
        l = s.poll_begin()
        a("buffer_load_dword v13, v12, s[52:55], 0 offen sc1")
        a("s_waitcnt vmcnt(0)")
        a("v_cmp_ne_u32 vcc, s15, v13")
        s.poll_end(l)
        a("v_lshlrev_b32 v12, 13, v3"); a("v_add_u32 v12, v12, v14")
        a("s_lshl_b32 s12, s4, 10"); a("s_lshl_b32 s14, s5, 5"); a("s_add_u32 s12, s12, s14")
        a("s_mov_b32 s86, 0x00010001"); a("s_mov_b32 s87, 0x00010001")
        a("s_mov_b64 exec, s[86:87]")
        a("buffer_store_dwordx2 v[4:5], v12, s[48:51], s12 offen sc1")
        a("buffer_store_dwordx2 v[6:7], v12, s[48:51], s12 offen offset:16 sc1")
        a("s_mov_b64 exec, -1")
        l = s.poll_begin()
        a("buffer_load_dwordx4 v[4:7], v1, s[48:51], s13 offen sc1")
        a("s_waitcnt vmcnt(0)")
        s.any_sentinel([4, 5, 6, 7], 12)
        s.poll_end(l)
        a(f"ds_write_b128 v1, v[4:7] offset:{L_Q}")
        a("s_waitcnt lgkmcnt(0)")
        a("s_barrier")
        a("s_setprio 0")
        a("s_cmp_ge_u32 s2, 224"); a("s_cbranch_scc1 L_nof1")
        a("s_mov_b32 s14, 7168"); a("v_mul_lo_u32 v12, v0, s14")
        a("s_lshl_b32 s12, s2, 4"); a("v_add_u32 v12, s12, v12")
        a("s_mov_b32 s14, 0")
        for i in range(4):
            for m, srd in ((0, "s[68:71]"), (1, "s[72:75]")):
                for row in range(2):
                    r = 64 + ((i * 2 + m) * 2 + row) * 4
                    a(f"buffer_load_dwordx4 v[{r}:{r+3}], v12, {srd}, s14 offen offset:{3584*row} {W}")
            a("s_add_u32 s14, s14, 458752")
        for r in range(16, 48): a(f"v_mov_b32 v{r}, 0")
        a("s_waitcnt vmcnt(0)")
        for i in range(4):
            for m, acc in ((0, accA), (1, accB)):
                ra = 64 + ((i * 2 + m) * 2) * 4
                s.gemv_pair(acc, ra, ra + 4, 52 + i, 56 + i, 12, 13)
        s.reduce64(accA); s.reduce64(accB)
        for c in range(4):
            s.bf16r(16 + c, 16 + c); s.bf16r(32 + c, 32 + c)
            s.silu(16 + c, 16 + c, 12); s.bf16r(16 + c, 16 + c)
            a(f"v_mul_f32 v{16+c}, v{16+c}, v{32+c}")
        a("v_cvt_pk_bf16_f32 v4, v16, v17"); a("v_cvt_pk_bf16_f32 v5, v18, v19")
        s.sanitize([4, 5])
        a("v_lshlrev_b32 v12, 12, v3"); a("v_add_u32 v12, v12, v14")
        a("s_lshl_b32 s12, s2, 4"); a(f"s_add_u32 s12, s12, {HBUF}")
        a("s_mov_b64 exec, s[86:87]")
        a("buffer_store_dwordx2 v[4:5], v12, s[48:51], s12 offen sc1")
        a("s_mov_b64 exec, -1")
        s.lab("L_nof1")
        a("s_cmp_ge_u32 s2, 64"); a("s_cbranch_scc1 L_nof2")
        a("v_lshlrev_b32 v12, 11, v0"); a("s_lshl_b32 s12, s2, 4"); a("v_add_u32 v12, s12, v12")
        a("s_mov_b32 s14, 0")
        for i in range(14):
            for row in range(2):
                r = 64 + (i * 2 + row) * 4
                a(f"buffer_load_dwordx4 v[{r}:{r+3}], v12, s[56:59], s14 offen offset:{1024*row} {W}")
            a("s_add_u32 s14, s14, 131072")
        a("v_lshlrev_b32 v13, 10, v3"); a("v_add_u32 v13, v13, v14")
        a("buffer_load_dwordx2 v[60:61], v13, s[40:43], s12 offen")
        a("v_lshlrev_b32 v12, 2, v0")
        a(f"s_mov_b32 s14, {HBUF}"); a(f"s_mov_b32 s15, {HBUF+4096}")
        l = s.poll_begin()
        for b in range(2):
            for i in range(14):
                a(f"buffer_load_dword v{176+14*b+i}, v12, s[48:51], s{14+b} offen offset:{256*i} sc1")
        a("s_waitcnt vmcnt(0)")
        s.any_sentinel(range(176, 204), 13)
        s.poll_end(l, sleep=8)
        for r in range(16, 32): a(f"v_mov_b32 v{r}, 0")
        for i in range(14):
            ra = 64 + (i * 2) * 4
            s.gemv_pair(accA, ra, ra + 4, 176 + i, 190 + i, 12, 13)
        s.reduce64(accA)
        for c in range(4):
            s.bf16r(16 + c, 16 + c); s.silu(16 + c, 16 + c, 12); s.bf16r(52 + c, 16 + c)
        a("v_lshlrev_b32 v56, 16, v60"); a("v_and_b32 v57, 0xffff0000, v60")
        a("v_lshlrev_b32 v58, 16, v61"); a("v_and_b32 v59, 0xffff0000, v61")
        s.lab("L_nof2")
        a("s_lshl_b32 s14, s4, 19"); a("s_lshl_b32 s15, s6, 15"); a("s_add_u32 s14, s14, s15")
        for j in range(8):
            for k in range(4):
                r = 128 + 4 * (4 * j + k)
                a(f"buffer_load_dwordx4 v[{r}:{r+3}], v1, s[60:63], s14 offen offset:{1024*k} {W}")
            a("s_add_u32 s14, s14, 4096")
        a("s_waitcnt vmcnt(0)")
        for pp in range(16):
            ra = 128 + 8 * pp; rb = ra + 4
            for k in range(4):
                a(f"v_perm_b32 v12, v{rb+k}, v{ra+k}, s80")
                a(f"v_perm_b32 v{rb+k}, v{rb+k}, v{ra+k}, s81")
                a(f"v_mov_b32 v{ra+k}, v12")
        a("v_and_b32 v12, 15, v0")
        a("v_lshlrev_b32 v4, 9, v2"); a("v_lshl_add_u32 v4, v12, 5, v4")
        a("v_lshlrev_b32 v5, 3, v2")
        a("v_lshrrev_b32 v13, 2, v0"); a("v_and_b32 v6, 3, v0"); a("v_lshlrev_b32 v6, 5, v6")
        a("v_lshl_add_u32 v6, v13, 8, v6"); a("v_lshlrev_b32 v7, 8, v13")
        a("v_lshlrev_b32 v8, 15, v12"); a("v_lshl_add_u32 v9, v2, 4, v8")
        a("s_lshl_b32 s14, s7, 19"); a("s_lshl_b32 s15, s4, 12"); a("s_add_u32 s14, s14, s15")
        a("s_lshl_b32 s15, s6, 8"); a("s_add_u32 s14, s14, s15"); a(f"s_add_u32 s14, s14, {PART}")
        a("v_lshlrev_b32 v10, 5, v0")
        a("v_lshlrev_b32 v11, 11, v0")
        a("s_setprio 3")
        a("s_barrier")
        for w in range(4):
            a(f"ds_read_b128 v[{64+8*w}:{67+8*w}], v4 offset:{L_PW+2048*w}")
            a(f"ds_read_b128 v[{68+8*w}:{71+8*w}], v4 offset:{L_PW+2048*w+16}")
        for w in range(4): a(f"ds_read_b64 v[{96+2*w}:{97+2*w}], v5 offset:{L_ML+32*w}")
        a("s_waitcnt lgkmcnt(0)")
        a("v_max3_f32 v24, v96, v98, v100"); a("v_max_f32 v24, v24, v102")
        for w in range(4):
            a(f"v_sub_f32 v{96+2*w}, v{96+2*w}, v24"); a(f"v_mul_f32 v{96+2*w}, s82, v{96+2*w}")
        for w in range(4): a(f"v_exp_f32 v{96+2*w}, v{96+2*w}")
        s.nop(1)
        a("v_mul_f32 v25, v96, v97")
        for w in range(1, 4): a(f"v_fmac_f32 v25, v{96+2*w}, v{97+2*w}")
        for i in range(8):
            a(f"v_mul_f32 v{16+i}, v96, v{64+i}")
            for w in range(1, 4): a(f"v_fmac_f32 v{16+i}, v{96+2*w}, v{64+8*w+i}")
        a("buffer_store_dwordx4 v[16:19], v6, s[48:51], s10 offen sc1")
        a("buffer_store_dwordx4 v[20:23], v6, s[48:51], s10 offen offset:16 sc1")
        a("buffer_store_dwordx2 v[24:25], v7, s[48:51], s10 offen offset:128 sc1")
        l = s.poll_begin()
        a("buffer_load_dwordx4 v[64:67], v9, s[48:51], s14 offen sc1")
        a("buffer_load_dwordx4 v[68:71], v9, s[48:51], s14 offen offset:64 sc1")
        a("buffer_load_dwordx2 v[72:73], v8, s[48:51], s14 offen offset:128 sc1")
        a("s_waitcnt vmcnt(0)")
        s.any_sentinel(range(64, 74), 12)
        s.poll_end(l, sleep=0)
        a("v_mov_b32 v74, v72")
        s.row_allreduce("v_max_f32", [74])
        a("v_sub_f32 v72, v72, v74"); a("v_mul_f32 v72, s82, v72"); a("v_exp_f32 v72, v72")
        s.nop(1)
        a("v_mul_f32 v73, v72, v73")
        for i in range(8): a(f"v_mul_f32 v{64+i}, v72, v{64+i}")
        s.nop(1)
        s.row_allreduce("v_add_f32", [73] + list(range(64, 72)))
        a("v_rcp_f32 v74, v73"); s.nop(1)
        for i in range(8):
            a(f"v_mul_f32 v75, v{64+i}, v74")
            a(f"v_fma_f32 v76, -v75, v73, v{64+i}")
            a(f"v_fma_f32 v{64+i}, v76, v74, v75")
        for k in range(4): a(f"v_cvt_pk_bf16_f32 v{76+k}, v{64+2*k}, v{65+2*k}")
        s.nop(1)
        for c in range(4):
            for k in range(4):
                pp = (2 * c + k) if k < 2 else (8 + 2 * c + k - 2)
                a(f"v_readlane_b32 s{16+pp}, v{76+k}, {16*c}")
        for i in range(8): a(f"v_mov_b32 v{16+i}, 0")
        s.nop(2)
        for pp in range(16):
            ra = 128 + 8 * pp; rb = ra + 4
            for k in range(4):
                a(f"v_dot2c_f32_bf16 v{16+2*k}, s{16+pp}, v{ra+k}")
                a(f"v_dot2c_f32_bf16 v{17+2*k}, s{16+pp}, v{rb+k}")
        s.nop(3)
        a("buffer_store_dwordx4 v[16:19], v10, s[48:51], s11 offen sc1")
        a("buffer_store_dwordx4 v[20:23], v10, s[48:51], s11 offen offset:16 sc1")
        a("s_cmp_ge_u32 s2, 64"); a("s_cbranch_scc1 L_end")
        a("s_lshl_b32 s14, s2, 5"); a(f"s_add_u32 s14, s14, {YBUF}")
        for j in range(1, 4): a(f"s_add_u32 s{14+j}, s{13+j}, 131072")
        l = s.poll_begin()
        for j in range(4):
            a(f"buffer_load_dwordx4 v[{64+8*j}:{67+8*j}], v11, s[48:51], s{14+j} offen sc1")
            a(f"buffer_load_dwordx4 v[{68+8*j}:{71+8*j}], v11, s[48:51], s{14+j} offen offset:16 sc1")
        a("s_waitcnt vmcnt(0)")
        s.any_sentinel(range(64, 96), 12)
        s.poll_end(l, sleep=0)
        for i in range(8):
            a(f"v_add_f32 v{16+i}, v{64+i}, v{72+i}"); a(f"v_add_f32 v{24+i}, v{80+i}, v{88+i}")
        s.reduce64(accA)
        for c in range(4):
            s.bf16r(16 + c, 16 + c)
            a(f"v_mul_f32 v{16+c}, v{16+c}, v{52+c}")
            s.bf16r(16 + c, 16 + c)
            a(f"v_add_f32 v{16+c}, v{16+c}, v{56+c}")
        a("v_cvt_pk_bf16_f32 v4, v16, v17"); a("v_cvt_pk_bf16_f32 v5, v18, v19")
        a("v_lshlrev_b32 v13, 10, v3"); a("v_add_u32 v13, v13, v14")
        a("s_lshl_b32 s12, s2, 4")
        a("s_mov_b64 exec, s[86:87]")
        a("buffer_store_dwordx2 v[4:5], v13, s[64:67], s12 offen")

if __name__ == "__main__":
    import argparse
    ap = argparse.ArgumentParser()
    ap.add_argument("-o", default="recurrent_scan__gqa_block_cached__glu_gated_swiglu__decode.s")
    ap.add_argument("-D", type=int, default=6)
    ap.add_argument("-w", default="")
    ap.add_argument("-t", type=int, default=2)
    x = ap.parse_args()
    open(x.o, "w").write(G(D=x.D, wflag=x.w, throttle=x.t).gen())
```
